```python
import torch

def _softmax(x, axis=-1):
    return torch.softmax(x, dim=axis)

def _gelu(x):
    return torch.nn.functional.gelu(x, approximate='tanh')

def _silu(x):
    return torch.nn.functional.silu(x)

def _sigmoid(x):
    return torch.sigmoid(x)

def _layernorm(x, axis=-1, eps=1e-05):
    m = x.mean(dim=axis, keepdim=True)
    v = x.var(dim=axis, keepdim=True, unbiased=False)
    return (x - m) / torch.sqrt(v + eps)

def _scatter_add(tgt, idx, src, axis=0):
    return tgt.clone().index_add_(axis, idx, src)

def _segment_sum(src, seg, n):
    out = torch.zeros((n,) + src.shape[1:], dtype=src.dtype)
    return out.index_add_(0, seg, src)

def _pad(x, pw):
    flat = tuple((v for pair in reversed(pw) for v in pair))
    return torch.nn.functional.pad(x, flat)
kernel_name = 'parallel_sum__sliding_block__mixer_gmlp__prompt'

def setup_inputs():

    _w = lambda a: (lambda t: t.to(torch.bfloat16) if t.is_floating_point() else t)(torch.as_tensor(a))

    def _A_setup():
        B, S, D = (1, 2048, 512)
        return {'x': _w((lambda *s: torch.randn(*s, dtype=torch.bfloat16) * 0.05)(B, S, D)), 'wqkv': _w((lambda *s: torch.randn(*s, dtype=torch.bfloat16) * 0.1)(D, 3 * D)), 'wo': _w((lambda *s: torch.randn(*s, dtype=torch.bfloat16) * 0.05)(D, D))}
    _A_in = _A_setup()

    def _B_setup():
        B, S, D, F = (1, 2048, 512, 1792)
        Fh = F // 2
        return {'x': _w((lambda *s: torch.randn(*s, dtype=torch.bfloat16) * 0.05)(B, S, D)), 'w_in': _w((lambda *s: torch.randn(*s, dtype=torch.bfloat16) * 0.4)(D, 2 * Fh)), 'w_sp': _w(0.01 * (lambda *s: torch.randn(*s, dtype=torch.bfloat16) * 0.4)(S, S)), 'b_sp': _w(1.0 + 0.01 * (lambda *s: torch.randn(*s, dtype=torch.bfloat16) * 0.05)(S)), 'w_out': _w((lambda *s: torch.randn(*s, dtype=torch.bfloat16) * 0.05)(Fh, D))}
    _B_in = _B_setup()
    return {'A_x': _A_in['x'], 'A_wqkv': _A_in['wqkv'], 'A_wo': _A_in['wo'], 'B_x': _B_in['x'], 'B_w_in': _B_in['w_in'], 'B_w_sp': _B_in['w_sp'], 'B_b_sp': _B_in['b_sp'], 'B_w_out': _B_in['w_out']}

def reference(A_x, A_wqkv, A_wo, B_x, B_w_in, B_w_sp, B_b_sp, B_w_out):

    def _A_ref(x, wqkv, wo):
        B, S, D = x.shape
        H = 32
        Dh = D // H
        W = 256
        qkv = (lambda x, *d: x.permute(*d))((x @ wqkv).reshape(B, S, 3, H, Dh), 2, 0, 3, 1, 4)
        q, k, v = (qkv[0], qkv[1], qkv[2])
        scores = torch.einsum('bhqd,bhkd->bhqk', q, k) * Dh ** (-0.5)
        idx = torch.arange(S)
        mask = (idx[:, None] - idx[None, :] >= 0) & (idx[:, None] - idx[None, :] < W)
        scores = torch.where(mask[None, None], scores, -1000000000.0)
        p = _softmax(scores, axis=-1)
        o = torch.einsum('bhqk,bhkd->bhqd', p, v)
        return (lambda x, *d: x.permute(*d))(o, 0, 2, 1, 3).reshape(B, S, D) @ wo

    def _B_ref(x, w_in, w_sp, b_sp, w_out):
        B, S, D = x.shape
        F = w_in.shape[-1]
        Fh = F // 2
        z = _gelu(torch.einsum('bsd,df->bsf', x, w_in))
        z1 = z[..., :Fh].clone()
        z2 = _layernorm(z[..., Fh:], axis=-1)
        g = torch.einsum('ts,bsf->btf', w_sp, z2) + b_sp[None, :, None]
        return torch.einsum('bsf,fd->bsd', z1 * g, w_out)
    x = A_x
    xn = _layernorm(x, axis=-1)
    return x + _A_ref(xn, A_wqkv, A_wo) + _B_ref(xn, B_w_in, B_w_sp, B_b_sp, B_w_out)
```

```python
def v(a, n=1):
    return f"v{a}" if n == 1 else f"v[{a}:{a+n-1}]"
def s(a, n=1):
    return f"s{a}" if n == 1 else f"s[{a}:{a+n-1}]"
def a(a_, n=1):
    return f"a{a_}" if n == 1 else f"a[{a_}:{a_+n-1}]"

class Asm:
    def __init__(self):
        self.L = []
        self.nlab = 0
    def __call__(self, txt):
        for ln in txt.split("\n"):
            ln = ln.strip()
            if ln:
                self.L.append("    " + ln if not ln.endswith(":") else ln)
    def label(self, name):
        self.L.append(name + ":")
    def newlabel(self, base="L"):
        self.nlab += 1
        return f"{base}_{self.nlab}"
    def c(self, txt):
        self.L.append("    ; " + txt)
    def text(self):
        return "\n".join(self.L) + "\n"

def srd(A, d, base, nbytes):
    A(f"s_mov_b32 {s(d)}, {s(base)}")
    A(f"s_and_b32 {s(d+1)}, {s(base+1)}, 0xffff")
    A(f"s_mov_b32 {s(d+2)}, {nbytes}")
    A(f"s_mov_b32 {s(d+3)}, 0x00020000")

HEADER = """; Kernarg layout for this problem (88 bytes, ptrs only, base s[0:1]):
"""

def build_file(kernels):
    out = HEADER
    single = len(kernels) == 1 and kernels[0].get("single", False)
    for k in kernels:
        g, b = k["grid"], k["block"]
        if single:
            out += f"; @launch grid=({g},1,1) block=({b},1,1) lds={k['lds']}\n"
        else:
            out += f"; @launch kernel={k['name']} grid=({g},1,1) block=({b},1,1) lds={k['lds']}\n"
    out += '.amdgcn_target "amdgcn-amd-amdhsa--gfx950"\n.text\n'
    seen = set()
    for k in kernels:
        if k["name"] in seen:
            continue
        seen.add(k["name"])
        out += f".globl {k['name']}\n.p2align 8\n.type {k['name']},@function\n{k['name']}:\n"
        out += k["body"]
    out += '.section .rodata,"a"\n'
    seen = set()
    for k in kernels:
        if k["name"] in seen:
            continue
        seen.add(k["name"])
        out += f""".p2align 6
.amdhsa_kernel {k['name']}
  .amdhsa_next_free_vgpr {k['vgpr']}
  .amdhsa_next_free_sgpr {k.get('sgpr',102)}
  .amdhsa_accum_offset {k['accum']}
  .amdhsa_group_segment_fixed_size 0
  .amdhsa_kernarg_size 88
  .amdhsa_user_sgpr_count 2
  .amdhsa_user_sgpr_kernarg_segment_ptr 1
  .amdhsa_system_sgpr_workgroup_id_x 1
  .amdhsa_float_denorm_mode_32 3
.end_amdhsa_kernel
"""
    return out
```

```python
import re
from asmlib import v, s, a

REG = re.compile(r'^(-|abs\()?([vas])(?:(\d+)|\[(\d+):(\d+)\])\)?$')
def regs(tok):
    tok = tok.strip()
    if tok in ('vcc', 'exec', 'm0'):
        return {(tok, 0)}
    if tok in ('vcc_lo', 'vcc_hi'):
        return {('vcc', 0)}
    m = REG.match(tok)
    if not m:
        return set()
    k = m.group(2)
    if m.group(3) is not None:
        return {(k, int(m.group(3)))}
    return {(k, i) for i in range(int(m.group(4)), int(m.group(5)) + 1)}

TRANS = ('v_exp_f32', 'v_log_f32', 'v_rcp_f32', 'v_rsq_f32', 'v_sqrt_f32', 'v_sin_f32', 'v_cos_f32')

class I:
    __slots__ = ('t', 'op', 'kind', 'w', 'r', 'A', 'B', 'C', 'passes', 'states', 'dpp', 'sdata', 'wide', 'skipreg')
    def __init__(self, t):
        self.t = t
        self.skipreg = None
        body = t.split(';')[0].strip()
        self.w = set(); self.r = set(); self.A = set(); self.B = set(); self.C = set()
        self.passes = 0; self.states = 1; self.dpp = False; self.sdata = set(); self.wide = False
        if not body or body.endswith(':') or body.startswith('.'):
            self.op = ''; self.kind = 'none'; self.states = 0
            return
        p = body.split(None, 1)
        op = p[0]; self.op = op
        rest = p[1] if len(p) > 1 else ''
        toks = [x.strip() for x in re.split(r',(?![^\[]*\])', rest)] if rest else []
        ops = []
        for x in toks:
            ops.append(x.split()[0] if x else x)
        if op == 's_nop':
            self.kind = 'salu'; self.states = int(ops[0]) + 1
        elif op.startswith('v_mfma'):
            self.kind = 'mfma'
            self.w = regs(ops[0]); self.A = regs(ops[1]); self.B = regs(ops[2]); self.C = regs(ops[3])
            self.r = self.A | self.B | self.C
            self.passes = 8 if '32x32x16' in op else 4
            assert ('32x32x16_bf16' in op) or ('16x16x32_bf16' in op), op
        elif op.startswith('v_'):
            self.kind = 'valu'
            self.dpp = ('quad_perm' in rest or 'row_' in rest.replace('row_mask', '') or op.endswith('_dpp'))
            if op.startswith('v_permlane'):
                self.w = regs(ops[0]) | regs(ops[1]); self.r = set(self.w)
            elif op.startswith('v_cmp'):
                self.w = regs(ops[0]); self.r = set().union(*[regs(x) for x in ops[1:]])
            elif op.startswith(('v_add_co', 'v_sub_co', 'v_addc_co')):
                self.w = regs(ops[0]) | regs(ops[1]); self.r = set().union(*[regs(x) for x in ops[2:]])
            else:
                self.w = regs(ops[0]); self.r = set().union(*[regs(x) for x in ops[1:]]) if len(ops) > 1 else set()
                if op.startswith(('v_fmac', 'v_dot2c', 'v_pk_fmac')):
                    self.r |= self.w
        elif op.startswith('ds_'):
            self.kind = 'ds'
            if op.startswith('ds_read') or op.startswith('ds_bpermute'):
                self.w = regs(ops[0]); self.r = set().union(*[regs(x) for x in ops[1:]])
            else:
                self.r = set().union(*[regs(x) for x in ops])
        elif op.startswith(('buffer_', 'global_')):
            self.kind = 'vmem'
            words = rest.replace(',', ' ').split()
            if 'lds' in words:
                self.r = set().union(*[regs(x) for x in ops]) | {('m0', 0)}
                self.op = op + '_lds'
            elif '_load' in op:
                self.w = regs(ops[0]); self.r = set().union(*[regs(x) for x in ops[1:]])
                if 'd16' in op: self.r |= self.w
            else:
                self.r = set().union(*[regs(x) for x in ops])
                if op.startswith('buffer_'):
                    self.sdata = regs(ops[0])
                else:
                    self.sdata = regs(ops[1])
                self.wide = op.endswith(('x3', 'x4'))
        elif op.startswith('s_'):
            self.kind = 'salu'
            if op.startswith(('s_cmp', 's_waitcnt', 's_barrier', 's_cbranch', 's_branch', 's_endpgm', 's_sleep', 's_setprio')):
                self.r = set().union(*[regs(x) for x in ops]) if ops else set()
            else:
                self.w = regs(ops[0]); self.r = set().union(*[regs(x) for x in ops[1:]]) if len(ops) > 1 else set()
                if 'saveexec' in op: self.w |= {('exec', 0)}
        else:
            raise ValueError(t)

def vg(rs):
    return {x for x in rs if x[0] in 'va'}
def sg(rs):
    return {x for x in rs if x[0] in ('s', 'vcc')}

def need(p, c):
    n = 0
    if p.kind == 'valu':
        pw = vg(p.w)
        if c.kind == 'mfma' and pw & c.r: n = max(n, 2)
        if c.kind == 'valu':
            if c.op.startswith('v_permlane') and pw & c.r: n = max(n, 2)
            if c.dpp and pw & c.r: n = max(n, 2)
            if c.op.startswith(('v_readfirstlane', 'v_readlane')) and pw & c.r: n = max(n, 1)
            if p.op.startswith(TRANS) and pw & c.r and not c.op.startswith(TRANS): n = max(n, 1)
            if sg(p.w) & c.r: n = max(n, 2)
        if c.kind == 'vmem' and sg(p.w) & c.r: n = max(n, 5)
        if c.kind == 'salu' and sg(p.w) & c.r: n = max(n, 1)
        if ('exec', 0) in p.w and c.kind == 'mfma': n = max(n, 4)
    if p.kind == 'salu':
        if ('m0', 0) in p.w and c.kind == 'vmem' and ('m0', 0) in c.r: n = max(n, 1)
    if p.kind == 'vmem' and p.wide and p.sdata:
        if p.sdata & c.w: n = max(n, 2 if c.kind == 'valu' else 1)
    if p.kind == 'mfma':
        d8 = p.passes == 8
        if c.kind == 'mfma':
            if p.w & c.C and not (p.w == c.C and p.passes == c.passes): n = max(n, 10 if d8 else 6)
            if p.w & (c.A | c.B): n = max(n, 12 if d8 else 8)
            if p.w & c.w and not (p.w & c.C): n = max(n, 12 if d8 else 8)
        elif c.kind in ('valu', 'ds', 'vmem'):
            if p.w & (c.r | c.w): n = max(n, 12 if d8 else 8)
            if c.kind == 'valu' and p.C & c.w: n = max(n, 7 if d8 else 3)
    return n

class Emit:
    def __init__(self):
        self.L = []
        self.vm_n = 0; self.vm_done = 0
        self.ds_n = 0; self.ds_done = 0
        self.nlab = 0
        self.region = None
    def raw(self, t):
        ins = I(t); ins.skipreg = self.region
        self.L.append(ins)
        return ins
    def __call__(self, txt):
        last = None
        for ln in txt.split('\n'):
            ln = ln.strip()
            if not ln: continue
            ins = self.raw(ln)
            if ins.kind == 'vmem':
                self.vm_n += 1; last = ('vm', self.vm_n)
            elif ins.kind == 'ds':
                self.ds_n += 1; last = ('ds', self.ds_n)
        return last
    def c(self, t):
        self.raw('; ' + t)
    def label(self, name):
        self.raw(name + ':')
    def newlabel(self, base='L'):
        self.nlab += 1
        return f'{base}_{self.nlab}'
    def wait(self, *hs):
        vm = max([h[1] for h in hs if h and h[0] == 'vm'], default=0)
        ds = max([h[1] for h in hs if h and h[0] == 'ds'], default=0)
        parts = []
        if vm > self.vm_done:
            parts.append(f'vmcnt({min(63, self.vm_n - vm)})'); self.vm_done = vm
        if ds > self.ds_done:
            parts.append(f'lgkmcnt({min(15, self.ds_n - ds)})'); self.ds_done = ds
        if parts:
            self.raw('s_waitcnt ' + ' '.join(parts))
    def wait_all_ds(self):
        self.wait(('ds', self.ds_n))
    def wait_all_vm(self):
        self.wait(('vm', self.vm_n))
    def begin_skip(self):
        self.nlab += 1; self.region = self.nlab
    def end_skip(self):
        self.region = None
    def finish(self):
        out = []
        nn = 0
        for c in self.L:
            if c.kind != 'none':
                dist = 0; req = 0
                k = len(out) - 1
                while k >= 0 and dist < 20:
                    p = out[k]
                    if p.kind != 'none':
                        n = need(p, c)
                        if n > dist: req = max(req, n - dist)
                        if p.skipreg is None or p.skipreg == c.skipreg:
                            dist += p.states
                    k -= 1
                if req:
                    nop = I(f's_nop {req-1}'); nop.skipreg = c.skipreg
                    out.append(nop); nn += 1
            out.append(c)
        self.nops = nn
        txt = []
        for x in out:
            txt.append(x.t if x.t.endswith(':') else '    ' + x.t)
        return '\n'.join(txt) + '\n'

class Regs:
    def __init__(self, n, start=0, topn=1000):
        self.topn = topn
        self.free_ = [True] * n
        for i in range(start): self.free_[i] = False
        self.hi = start
    def alloc(self, n, align=1):
        if n > 1: align = max(align, 2)
        if n >= self.topn:
            b = (len(self.free_) - n) // align * align
            while b >= 0:
                if all(self.free_[b:b + n]):
                    for i in range(b, b + n): self.free_[i] = False
                    self.hi = max(self.hi, b + n)
                    return b
                b -= align
            raise RuntimeError(f'out of registers for {n}')
        b = 0
        while b + n <= len(self.free_):
            if all(self.free_[b:b + n]):
                for i in range(b, b + n): self.free_[i] = False
                self.hi = max(self.hi, b + n)
                return b
            b += align
        raise RuntimeError(f'out of registers for {n}')
    def free(self, b, n=1):
        for i in range(b, b + n):
            assert not self.free_[i], i
            self.free_[i] = True

def interleave(main, fill, start=0, end=None):
    end = len(main) if end is None else end
    out = []
    n = max(1, end - start); m = len(fill); k = 0
    for i, x in enumerate(main):
        out.append(x)
        if start <= i < end:
            while k < m and (k + 1) * n <= (i - start + 1) * m:
                out.append(fill[k]); k += 1
    out.extend(fill[k:])
    return out
```

```python
import sys, struct
from asmlib import v, s, a, build_file
from emit import Emit, Regs, interleave

NAME = 'parallel_sum__sliding_block__mixer_gmlp__prompt_kernel'

WS_E = 0
WS_F1 = 0x10000
WS_F2 = 0x40000
WS_F3 = 0x70000
WS_STATS = 0x100000
WS_KV = 0x200000
WS_ZN = 0x600000
WS_ACT = 0xA00000
WS_STAMP = 0x8000000
WS_BYTES = 268435456
OOB = 0x40000000
ACT_MT = 44 * 1024

SLOT = 28672
XN = 3 * SLOT
ZT = 5 * SLOT
ZT_P = 72
PART = ZT + 4 * 64 * ZT_P
MR = PART
LDS_BYTES = 163840
NA = 19
def apos(p):
    p %= NA
    return SLOT + 8192 * p if p < 16 else 8192 * (p - 16)

def f2u(x):
    return struct.unpack('<I', struct.pack('<f', x))[0]

sW, sI, sJ, sTAG, sW1K = 3, 4, 5, 6, 7
X, WQKV, WO, WIN, WSP, BSP, WOUT, OUT, WS = 8, 12, 16, 20, 24, 28, 32, 36, 40
def srd(b): return s(b, 4)


class Cfg:
    D = 3
    PD = 6
    FS = 4
    stamps = False
    stop = None
    spin = 1 << 18
    pf = True
    def __init__(self, **kw):
        for k, x in kw.items():
            assert hasattr(self, k), k
            setattr(self, k, x)


def gen(cfg):
    E = Emit()
    V = Regs(256, 1, topn=16)
    S = Regs(102, 44)
    FS = cfg.FS
    nstamp = [0]
    stamp_names = []
    sST = S.alloc(2, 2) if cfg.stamps else None
    sSTo = S.alloc(1) if cfg.stamps else None
    vST = V.alloc(2) if cfg.stamps else None

    def stamp(name):
        if not cfg.stamps: return
        E.raw(f's_memtime {s(sST, 2)}')
        E.raw('s_waitcnt lgkmcnt(0)'); E.ds_done = E.ds_n
        E(f'v_mov_b32 {v(vST)}, {s(sST)}\nv_mov_b32 {v(vST+1)}, 0')
        E(f'buffer_store_dword {v(vST)}, {v(vST+1)}, {srd(WS)}, {s(sSTo)} offen offset:{4*nstamp[0]}')
        nstamp[0] += 1; stamp_names.append(name)

    class Stop(Exception): pass
    def phase_end(name):
        stamp(name)
        if cfg.stop == name: raise Stop()

    def run(lst):
        for f in lst: f()

    def body():
        E('s_cmp_ge_u32 s2, 256\ns_cbranch_scc1 L_end')
        E('s_load_dwordx16 s[48:63], s[0:1], 0\ns_load_dwordx2 s[44:45], s[0:1], 64\ns_load_dwordx2 s[46:47], s[0:1], 80')
        for r in range(44, 64): S.free_[r] = False
        vRho = V.alloc(1)
        t0 = V.alloc(8); t1, t2, t3 = t0 + 1, t0 + 2, t0 + 3
        QF = V.alloc(8, 4); vA0 = V.alloc(2); vA1 = vA0 + 1
        vG, vL16, vPF, vPid, vWoff, vSwz, vRowC, vF, vFoff, vTag, vOne, vB1, vOo = [V.alloc(1) for _ in range(13)]
        BV = V.alloc(4)
        E(f'v_lshrrev_b32 {v(t0)}, 6, v0\nv_and_b32 v0, 63, v0\nv_readfirstlane_b32 {s(sW)}, {v(t0)}')
        sA, sB = S.alloc(1), S.alloc(1)
        E(f's_and_b32 {s(sA)}, s2, 7\ns_lshr_b32 {s(sB)}, s2, 3')
        E(f's_lshr_b32 {s(sI)}, {s(sA)}, 1\ns_lshl_b32 {s(sI)}, {s(sI)}, 3\ns_lshr_b32 {s(sJ)}, {s(sB)}, 2\ns_add_u32 {s(sI)}, {s(sI)}, {s(sJ)}')
        E(f's_and_b32 {s(sJ)}, {s(sA)}, 1\ns_lshl_b32 {s(sJ)}, {s(sJ)}, 2\ns_and_b32 {s(sB)}, {s(sB)}, 3\ns_add_u32 {s(sJ)}, {s(sJ)}, {s(sB)}')
        E(f's_lshl_b32 {s(sW1K)}, {s(sW)}, 10')
        vR4, vC4 = V.alloc(1), V.alloc(1)
        E(f'v_and_b32 {v(vRho)}, 15, v0\nv_lshrrev_b32 {v(vG)}, 4, v0\nv_lshrrev_b32 {v(vR4)}, 2, v0\nv_and_b32 {v(vC4)}, 3, v0')
        E(f'v_lshlrev_b32 {v(vL16)}, 4, v0')
        vX = V.alloc(1); sX = S.alloc(1)
        E(f'v_lshlrev_b32 {v(vX)}, 10, {v(vR4)}\nv_lshl_add_u32 {v(vX)}, {v(vC4)}, 4, {v(vX)}')
        E(f's_lshl_b32 {s(sX)}, {s(sI)}, 2\ns_add_u32 {s(sX)}, {s(sX)}, {s(sW)}\ns_lshl_b32 {s(sX)}, {s(sX)}, 14')
        E.raw('s_waitcnt lgkmcnt(0)')
        def mk(d, base, nbytes):
            E(f's_mov_b32 {s(d)}, {s(base)}\ns_and_b32 {s(d+1)}, {s(base+1)}, 0xffff\ns_mov_b32 {s(d+2)}, {nbytes}\ns_mov_b32 {s(d+3)}, 0x00020000')
        mk(X, 48, 2048 * 512 * 2)
        XR = V.alloc(64, 4)
        sE = S.alloc(1)
        E(f's_load_dword {s(sE)}, s[46:47], {WS_E}')
        mk(WIN, 56, 512 * 1792 * 2)
        sT = S.alloc(1); sT2 = S.alloc(1)
        if cfg.pf:
            E(f's_lshr_b32 {s(sT)}, s2, 3\ns_lshl_b32 {s(sT)}, {s(sT)}, 2\ns_add_u32 {s(sT)}, {s(sT)}, {s(sW)}\ns_lshl_b32 {s(sT)}, {s(sT)}, 6')
            E(f'v_add_u32 {v(vPid)}, {s(sT)}, v0')
            E(f'v_lshrrev_b32 {v(t0)}, 1, {v(vPid)}')
            E(f's_and_b32 {s(sT)}, {s(sI)}, 24\ns_lshl_b32 {s(sT)}, {s(sT)}, 16')
            E(f'v_lshlrev_b32 {v(t1)}, 7, {v(t0)}\nv_and_b32 {v(t2)}, 1, v0\nv_lshlrev_b32 {v(t2)}, 30, {v(t2)}\nv_or_b32 {v(t1)}, {v(t1)}, {v(t2)}')
            E(f'buffer_load_dword {v(vPF)}, {v(t1)}, {srd(X)}, {s(sT)} offen')
            vPw = V.alloc(1)
            E(f'v_lshrrev_b32 {v(t1)}, 3, {v(t0)}\nv_mul_u32_u24 {v(t1)}, 3584, {v(t1)}\nv_and_b32 {v(t2)}, 7, {v(t0)}\nv_lshl_add_u32 {v(t1)}, {v(t2)}, 7, {v(t1)}')
            E(f'v_add_u32 {v(t2)}, 1, {v(t2)}\nv_lshrrev_b32 {v(t2)}, 3, {v(t2)}\nv_not_b32 {v(t3)}, v0\nv_or_b32 {v(t2)}, {v(t2)}, {v(t3)}\nv_and_b32 {v(t2)}, 1, {v(t2)}\nv_lshlrev_b32 {v(t2)}, 30, {v(t2)}')
            E(f'v_or_b32 {v(vPw)}, {v(t1)}, {v(t2)}')
            sPZ = S.alloc(1)
            E(f's_lshr_b32 {s(sPZ)}, {s(sJ)}, 2\ns_mul_i32 {s(sPZ)}, {s(sPZ)}, 896\ns_add_u32 {s(sT)}, {s(sPZ)}, 1792')
            E(f'buffer_load_dword {v(vPF)}, {v(vPw)}, {srd(WIN)}, {s(sT)} offen')
        hX = [E(f'buffer_load_dwordx4 {v(XR+4*n,4)}, {v(vX)}, {srd(X)}, {s(sX)} offen offset:{64*n}') for n in range(16)]
        mk(WQKV, 50, 512 * 1536 * 2); mk(WO, 52, 512 * 512 * 2); mk(WSP, 58, 2048 * 2048 * 2)
        mk(BSP, 60, 2048 * 2); mk(WOUT, 62, 896 * 512 * 2); mk(OUT, 44, 2048 * 512 * 2); mk(WS, 46, WS_BYTES)
        if cfg.stamps:
            E(f's_lshl_b32 {s(sSTo)}, s2, 2\ns_add_u32 {s(sSTo)}, {s(sSTo)}, {s(sW)}\ns_lshl_b32 {s(sSTo)}, {s(sSTo)}, 8\ns_add_u32 {s(sSTo)}, {s(sSTo)}, {WS_STAMP}')
        for r in [44, 45] + list(range(48, 64)): S.free_[r] = True
        stamp('start')

        vZoff = V.alloc(7)
        E(f's_lshl_b32 {s(sT)}, {s(sW)}, 6')
        for m in range(7):
            E(f'v_add_u32 {v(t0)}, {s(sT)}, v0')
            if m: E(f'v_add_u32 {v(t0)}, {256*m}, {v(t0)}')
            E(f'v_mul_u32_u24 {v(t1)}, 4682, {v(t0)}\nv_lshrrev_b32 {v(t1)}, 16, {v(t1)}')
            E(f'v_mul_u32_u24 {v(t2)}, 14, {v(t1)}\nv_sub_u32 {v(t2)}, {v(t0)}, {v(t2)}')
            E(f'v_mul_u32_u24 {v(t1)}, 3584, {v(t1)}\nv_lshl_add_u32 {v(vZoff+m)}, {v(t2)}, 4, {v(t1)}')
        vQoff = V.alloc(1)
        E(f'v_lshrrev_b32 {v(t0)}, 3, v0\nv_lshrrev_b32 {v(t1)}, 4, v0\nv_lshlrev_b32 {v(t1)}, 1, {v(t1)}\nv_and_b32 {v(t2)}, 7, v0\nv_xor_b32 {v(t1)}, {v(t1)}, {v(t2)}\nv_lshlrev_b32 {v(t1)}, 4, {v(t1)}')
        E(f'v_mul_u32_u24 {v(t2)}, 3072, {v(t0)}\nv_add_u32 {v(vQoff)}, {v(t2)}, {v(t1)}\nv_lshl_add_u32 {v(vWoff)}, {v(t0)}, 10, {v(t1)}')
        vZtr, vQtr = V.alloc(1), V.alloc(1)
        E(f'v_mul_u32_u24 {v(t0)}, 224, {v(vR4)}\nv_lshl_add_u32 {v(t0)}, {v(vC4)}, 3, {v(t0)}\ns_lshl_b32 {s(sT)}, {s(sW)}, 6\nv_add_u32 {v(vZtr)}, {s(sT)}, {v(t0)}')
        E(f'v_bfe_u32 {v(vSwz)}, v0, 3, 2')
        E(f'v_lshlrev_b32 {v(t0)}, 7, {v(vR4)}\nv_lshl_add_u32 {v(vRowC)}, {v(vC4)}, 3, {v(t0)}')
        E(f'v_xor_b32 {v(t0)}, {s(sW)}, {v(vSwz)}\nv_lshl_add_u32 {v(vQtr)}, {v(t0)}, 5, {v(vRowC)}')
        vXw, vXr = V.alloc(1), V.alloc(1)
        E(f'v_and_b32 {v(t0)}, 1, v0\nv_lshlrev_b32 {v(t0)}, 9, {v(t0)}\nv_lshl_add_u32 {v(t0)}, {v(vR4)}, 4, {v(t0)}\nv_bfe_u32 {v(t1)}, v0, 1, 1\nv_lshl_add_u32 {v(t0)}, {v(t1)}, 3, {v(t0)}')
        E(f's_add_u32 {s(sT)}, {s(sW1K)}, {XN}\nv_add_u32 {v(vXw)}, {s(sT)}, {v(t0)}\nv_add_u32 {v(vXr)}, {XN}, {v(vL16)}')

        sZ2, sZ1, sQ = S.alloc(1), S.alloc(1), S.alloc(1)
        E(f's_mul_i32 {s(sZ1)}, {s(sJ)}, 224\ns_add_u32 {s(sZ2)}, {s(sZ1)}, 1792')
        E(f's_mul_i32 {s(sQ)}, {s(sW)}, {8*3072}\ns_lshl_b32 {s(sT)}, {s(sJ)}, 7\ns_add_u32 {s(sQ)}, {s(sQ)}, {s(sT)}')
        hSt = {}
        def stage_dmas(n):
            slot = (n % 5) * SLOT
            L = []
            if n < 4 or n >= 12:
                sb = sZ2 if n < 4 else sZ1
                for m in range(7):
                    def f(m=m, sb=sb):
                        E(f's_add_u32 m0, {s(sW1K)}, {slot + 4096*m}')
                        if m == 0 and (n % 4): E(f's_add_u32 {s(sb)}, {s(sb)}, {128*3584}')
                        hSt[n] = E(f'buffer_load_dwordx4 {v(vZoff+m)}, {srd(WIN)}, {s(sb)} offen lds')
                    L.append(f)
            else:
                for hk in range(2):
                    for p in range(3):
                        def f(hk=hk, p=p):
                            E(f's_add_u32 m0, {s(sW1K)}, {slot + hk*12288 + p*4096 - p*1024}')
                            if p == 0 and (n > 4 or hk): E(f's_add_u32 {s(sQ)}, {s(sQ)}, {32*3072}')
                            hSt[n] = E(f'buffer_load_dwordx4 {v(vQoff)}, {srd(WQKV)}, {s(sQ)} offen offset:{p*1024} lds')
                        L.append(f)
            return L

        sAo, sW2K = S.alloc(1), S.alloc(1)
        E(f'v_lshrrev_b32 {v(t0)}, 3, v0\nv_lshrrev_b32 {v(t1)}, 4, v0\nv_and_b32 {v(t2)}, 7, v0\nv_xor_b32 {v(t1)}, {v(t1)}, {v(t2)}')
        E(f'v_lshlrev_b32 {v(t0)}, 12, {v(t0)}\nv_lshl_add_u32 {v(vA0)}, {v(t1)}, 4, {v(t0)}\nv_xor_b32 {v(vA1)}, 64, {v(vA0)}\nv_add_u32 {v(vA1)}, {8*4096}, {v(vA1)}')
        E(f's_lshl_b32 {s(sAo)}, {s(sX)}, 2\ns_lshl_b32 {s(sW2K)}, {s(sW)}, 11')
        hA = {}
        def a_dmas(st):
            L = []
            for q in range(2):
                def f(q=q):
                    E(f's_add_u32 m0, {s(sW2K)}, {apos(st) + 1024*q}')
                    if q == 0 and st: E(f's_add_u32 {s(sAo)}, {s(sAo)}, 128')
                    hA[st] = E(f'buffer_load_dwordx4 {v(vA0+q)}, {srd(WSP)}, {s(sAo)} offen lds')
                L.append(f)
            return L
        assert vA1 == vA0 + 1

        def pf_qkv():
            def f():
                E(f'v_lshrrev_b32 {v(t0)}, 4, {v(vPid)}\nv_mul_u32_u24 {v(t0)}, 3072, {v(t0)}\nv_bfe_u32 {v(t1)}, {v(vPid)}, 2, 2\nv_lshl_add_u32 {v(t0)}, {v(t1)}, 10, {v(t0)}')
                E(f'v_add_u32 {v(t1)}, 1, {v(t1)}\nv_lshrrev_b32 {v(t1)}, 2, {v(t1)}\nv_lshlrev_b32 {v(t1)}, 30, {v(t1)}\nv_or_b32 {v(t0)}, {v(t0)}, {v(t1)}')
                E(f'v_and_b32 {v(t1)}, 3, {v(vPid)}\nv_lshl_add_u32 {v(t0)}, {v(t1)}, 7, {v(t0)}\ns_lshr_b32 {s(sT)}, {s(sJ)}, 2\ns_lshl_b32 {s(sT)}, {s(sT)}, 9')
                E(f'buffer_load_dword {v(vPF)}, {v(t0)}, {srd(WQKV)}, {s(sT)} offen')
                E(f'buffer_load_dword {v(vPF)}, {v(vPw)}, {srd(WIN)}, {s(sPZ)} offen')
            return [f] if cfg.pf else []
        def pf_wsp(k):
            def f():
                E(f'v_lshrrev_b32 {v(t0)}, 4, {v(vPid)}\nv_lshlrev_b32 {v(t0)}, 12, {v(t0)}\nv_and_b32 {v(t1)}, 15, {v(vPid)}\nv_lshl_add_u32 {v(t0)}, {v(t1)}, 7, {v(t0)}')
                E(f's_and_b32 {s(sT)}, {s(sI)}, 24\ns_lshl_b32 {s(sT)}, {s(sT)}, 18')
                E(f'buffer_load_dword {v(vPF)}, {v(t0)}, {srd(WSP)}, {s(sT)} offen offset:{2048*k}')
            return [f] if cfg.pf else []
        def pf_w3():
            def f():
                E(f'v_lshrrev_b32 {v(t0)}, 2, {v(vPid)}\nv_lshlrev_b32 {v(t0)}, 10, {v(t0)}\nv_and_b32 {v(t1)}, 3, {v(vPid)}\nv_lshl_add_u32 {v(t0)}, {v(t1)}, 7, {v(t0)}')
                E(f's_lshr_b32 {s(sT)}, {s(sJ)}, 2\ns_lshl_b32 {s(sT)}, {s(sT)}, 9')
                E(f'buffer_load_dword {v(vPF)}, {v(t0)}, {srd(WOUT)}, {s(sT)} offen')
                E(f'v_subrev_u32 {v(t0)}, {1024*1024}, {v(t0)}')
                E(f'buffer_load_dword {v(vPF)}, {v(t0)}, {srd(WO)}, {s(sT)} offen')
            return [f] if cfg.pf else []

        XF = V.alloc(128, 2)
        ACC = V.alloc(8, 2)
        sMask = S.alloc(1)
        E(f's_mov_b32 {s(sMask)}, 0xffff0000')
        for k in range(8): E(f'v_mov_b32 {v(ACC+k)}, 0')
        L = []
        for n in range(16):
            def f(n=n):
                E.wait(hX[n])
                for d in range(4):
                    E(f'v_lshlrev_b32 {v(XF+8*n+2*d)}, 16, {v(XR+4*n+d)}\nv_and_b32 {v(XF+8*n+2*d+1)}, {s(sMask)}, {v(XR+4*n+d)}')
                for d in range(4):
                    p = v(XF + 8*n + 2*d, 2); sa = v(ACC + 2*(d & 1), 2); qa = v(ACC + 4 + 2*(d & 1), 2)
                    E(f'v_pk_add_f32 {sa}, {sa}, {p}\nv_pk_fma_f32 {qa}, {p}, {p}, {qa}')
            L.append(f)
        pre = stage_dmas(0) + stage_dmas(1) + pf_qkv() + stage_dmas(2)
        run(interleave(L, pre[:12]))
        MRx = V.alloc(2)
        E.raw('s_waitcnt lgkmcnt(0)')
        E(f's_mul_i32 {s(sTAG)}, {s(sE)}, 0x9E3779B1\ns_add_u32 {s(sTAG)}, {s(sTAG)}, 0x7F4A7C15')
        E(f'v_pk_add_f32 {v(ACC,2)}, {v(ACC,2)}, {v(ACC+2,2)}\nv_pk_add_f32 {v(ACC+4,2)}, {v(ACC+4,2)}, {v(ACC+6,2)}')
        E(f'v_add_f32 {v(ACC)}, {v(ACC)}, {v(ACC+1)}\nv_add_f32 {v(ACC+4)}, {v(ACC+4)}, {v(ACC+5)}')
        for qp in ('[1,0,3,2]', '[2,3,0,1]'):
            E(f'v_add_f32_dpp {v(ACC)}, {v(ACC)}, {v(ACC)} quad_perm:{qp} row_mask:0xf bank_mask:0xf')
            E(f'v_add_f32_dpp {v(ACC+4)}, {v(ACC+4)}, {v(ACC+4)} quad_perm:{qp} row_mask:0xf bank_mask:0xf')
        def mean_rstd(dst, vs, vq, n):
            E(f'v_mul_f32 {v(vs)}, {hex(f2u(1.0/n))}, {v(vs)}\nv_mul_f32 {v(vq)}, {hex(f2u(1.0/n))}, {v(vq)}')
            E(f'v_fma_f32 {v(vq)}, -{v(vs)}, {v(vs)}, {v(vq)}\nv_max_f32 {v(vq)}, 0, {v(vq)}\nv_add_f32 {v(vq)}, {hex(f2u(1e-5))}, {v(vq)}')
            E(f'v_rsq_f32 {v(dst)}, {v(vq)}\nv_mul_f32 {v(dst+1)}, -1.0, {v(vs)}\nv_mul_f32 {v(dst+1)}, {v(dst+1)}, {v(dst)}')
        mean_rstd(MRx, ACC, ACC + 4, 512)
        L = []
        for n in range(16):
            def f(n=n):
                for d in range(4):
                    p = v(XF + 8*n + 2*d, 2)
                    E(f'v_pk_fma_f32 {p}, {p}, {v(MRx,2)}, {v(MRx,2)} op_sel:[0,0,1] op_sel_hi:[1,0,1]')
                for d in range(4):
                    E(f'v_cvt_pk_bf16_f32 {v(XR+4*n+d)}, {v(XF+8*n+2*d)}, {v(XF+8*n+2*d+1)}')
                E(f'ds_write_b64 {v(vXw)}, {v(XR+4*n,2)} offset:{4096*n}\nds_write_b64 {v(vXw)}, {v(XR+4*n+2,2)} offset:{4096*n+256}')
            L.append(f)
        run(interleave(L, pre[12:]))
        V.free(XF, 128); V.free(ACC, 8); V.free(MRx, 2)
        E.wait_all_ds(); E.wait(hSt[0]); E('s_barrier')
        V.free(XR, 64)
        stamp('xn')

        AZ1 = V.alloc(32, 4)
        WF = V.alloc(24, 4)
        AZ2 = V.alloc(32, 4); AQ = V.alloc(48, 4)
        vCur = V.alloc(1)
        def xa(mt, ks): return a((ks * 4 + mt) * 4, 4)
        def step_info(g):
            ps = g // 16; ks = g % 16
            if ps == 1: return 4 + ks // 2, ks % 2, 2, ks, ps
            return (0 if ps == 0 else 12) + ks // 4, ks % 4, 4, ks, ps
        hW = {}
        def w_reads(g):
            n, sub, per, ks, ps = step_info(g)
            buf = WF + 12 * (g & 1)
            if sub == 0:
                E(f'v_add_u32 {v(vCur)}, {(n % 5) * SLOT}, {v(vQtr if ps == 1 else vZtr)}')
            if ps == 1:
                for p in range(3):
                    for e in range(2):
                        hW[g] = E(f'ds_read_b64_tr_b16 {v(buf+4*p+2*e,2)}, {v(vCur)} offset:{sub*12288 + p*4096 + e*2048}')
            else:
                for T in range(2):
                    for e in range(2):
                        hW[g] = E(f'ds_read_b64_tr_b16 {v(buf+4*T+2*e,2)}, {v(vCur)} offset:{sub*7168 + e*3584 + T*32}')
        hXa = {}
        def x_read(mt, ks):
            def f(): hXa[(mt, ks)] = E(f'ds_read_b128 {xa(mt,ks)}, {v(vXr)} offset:{(ks*4+mt)*1024}')
            return f
        def mfmas(g):
            n, sub, per, ks, ps = step_info(g)
            buf = WF + 12 * (g & 1)
            L = []
            for T in range(3 if ps == 1 else 2):
                for mt in range(4):
                    def f(T=T, mt=mt):
                        if ps == 0: E.wait(hXa[(mt, ks)])
                        d = v((AZ2, AQ, AZ1)[ps] + 16*T + 4*mt, 4)
                        c = d if ks else '0'
                        wv = v(buf + 4*T, 4)
                        if ps == 1 and T == 2: E(f'v_mfma_f32_16x16x32_bf16 {d}, {xa(mt,ks)}, {wv}, {c}')
                        else: E(f'v_mfma_f32_16x16x32_bf16 {d}, {wv}, {xa(mt,ks)}, {c}')
                    L.append(f)
            return L

        CG = V.alloc(2)
        k1 = -2.0 * 0.7978845608028654 * 1.4426950408889634
        E(f'v_mov_b32 {v(CG)}, {hex(f2u(k1*0.044715))}\nv_mov_b32 {v(CG+1)}, {hex(f2u(k1))}')
        def gelu(base, n, fill=()):
            T = V.alloc(16, 2)
            L = []
            for b in range(0, n, 16):
                for k in range(0, 16, 2):
                    def f(b=b, k=k):
                        p = v(base + b + k, 2); t = v(T + k, 2)
                        E(f'v_pk_mul_f32 {t}, {p}, {p}\nv_pk_fma_f32 {t}, {t}, {v(CG,2)}, {v(CG,2)} op_sel:[0,0,1] op_sel_hi:[1,0,1]\nv_pk_mul_f32 {t}, {t}, {p}')
                    L.append(f)
                for k in range(16): L.append(lambda k=k: E(f'v_exp_f32 {v(T+k)}, {v(T+k)}'))
                for k in range(0, 16, 2): L.append(lambda k=k: E(f'v_pk_add_f32 {v(T+k,2)}, {v(T+k,2)}, 1.0 op_sel_hi:[1,0]'))
                for k in range(16): L.append(lambda k=k: E(f'v_rcp_f32 {v(T+k)}, {v(T+k)}'))
                for k in range(0, 16, 2): L.append(lambda k=k, b=b: E(f'v_pk_mul_f32 {v(base+b+k,2)}, {v(base+b+k,2)}, {v(T+k,2)}'))
            run(interleave(L, list(fill)))
            V.free(T, 16)
        def zero_tile1(base):
            lab = E.newlabel('L_z')
            E(f's_cmp_lg_u32 {s(sW)}, 3\ns_cbranch_scc1 {lab}')
            E.begin_skip()
            for k in range(16): E(f'v_mov_b32 {v(base+16+k)}, 0')
            E.end_skip()
            E.label(lab)

        E(f'v_and_b32 {v(t0)}, 31, v0\nv_mul_u32_u24 {v(vFoff)}, {FS}, {v(t0)}')
        E(f'v_mov_b32 {v(vTag)}, {s(sTAG)}\nv_min_u32 {v(vOne)}, 1, v0\nv_lshlrev_b32 {v(vOne)}, 30, {v(vOne)}')
        sM = S.alloc(2, 2); sM2 = S.alloc(2, 2); sSpin = S.alloc(1)
        def poll_issue(so):
            return E(f'buffer_load_dword {v(vF)}, {v(vFoff)}, {srd(WS)}, {s(so)} offen sc1')
        def poll_check(h, so, mask):
            ok = E.newlabel('L_ok'); lp = E.newlabel('L_poll')
            E.wait(h)
            E(f'v_cmp_eq_u32 vcc, {s(sTAG)}, {v(vF)}\ns_and_b64 {s(sM2,2)}, vcc, {mask}\ns_cmp_eq_u64 {s(sM2,2)}, {mask}\ns_cbranch_scc1 {ok}')
            E.begin_skip()
            E(f's_mov_b32 {s(sSpin)}, {cfg.spin}')
            E.label(lp)
            E.raw(f'buffer_load_dword {v(vF)}, {v(vFoff)}, {srd(WS)}, {s(so)} offen sc1')
            E.raw('s_waitcnt vmcnt(0)')
            E(f'v_cmp_eq_u32 vcc, {s(sTAG)}, {v(vF)}\ns_and_b64 {s(sM2,2)}, vcc, {mask}\ns_cmp_eq_u64 {s(sM2,2)}, {mask}\ns_cbranch_scc1 {ok}')
            E(f's_sub_u32 {s(sSpin)}, {s(sSpin)}, 1\ns_cmp_lg_u32 {s(sSpin)}, 0\ns_cbranch_scc1 {lp}')
            E.end_skip()
            E.label(ok)
        sF1r, sF1w, sF2r, sF2w = S.alloc(1), S.alloc(1), S.alloc(1), S.alloc(1)
        E(f's_lshl_b32 {s(sT)}, {s(sJ)}, 2\ns_add_u32 {s(sT)}, {s(sT)}, {s(sW)}')
        E(f's_mul_i32 {s(sF1r)}, {s(sT)}, {32*FS}\ns_add_u32 {s(sF1r)}, {s(sF1r)}, {WS_F1}\ns_mul_i32 {s(sT2)}, {s(sI)}, {FS}\ns_add_u32 {s(sF1w)}, {s(sF1r)}, {s(sT2)}')
        E(f's_mul_i32 {s(sF2r)}, {s(sI)}, {32*FS}\ns_add_u32 {s(sF2r)}, {s(sF2r)}, {WS_F2}\ns_mul_i32 {s(sT2)}, {s(sT)}, {FS}\ns_add_u32 {s(sF2w)}, {s(sF2r)}, {s(sT2)}')
        sHead = S.alloc(1)
        E(f's_mov_b32 {s(sHead)}, {s(sT)}')
        def flag(so):
            return E(f'buffer_store_dword {v(vTag)}, {v(vOne)}, {srd(WS)}, {s(so)} offen sc1')

        STAT = V.alloc(8, 4)
        def red4(r0, r1, r2, r3):
            E(f'v_permlane32_swap_b32 {v(r0)}, {v(r2)}\nv_permlane32_swap_b32 {v(r1)}, {v(r3)}')
            E(f'v_add_f32 {v(r0)}, {v(r0)}, {v(r2)}\nv_add_f32 {v(r1)}, {v(r1)}, {v(r3)}')
            E(f'v_permlane16_swap_b32 {v(r0)}, {v(r1)}\nv_add_f32 {v(r0)}, {v(r0)}, {v(r1)}')

        def z2_epilogue(fill):
            zero_tile1(AZ2)
            gelu(AZ2, 32, fill)
            T = V.alloc(16, 2)
            for mt in range(4):
                p = [v(AZ2 + 16*(k >> 1) + 4*mt + 2*(k & 1), 2) for k in range(4)]
                sa = v(T + 4*mt, 2); qa = v(T + 4*mt + 2, 2)
                E(f'v_pk_add_f32 {sa}, {p[0]}, {p[1]}\nv_pk_mul_f32 {qa}, {p[0]}, {p[0]}')
                E(f'v_pk_add_f32 {sa}, {sa}, {p[2]}\nv_pk_fma_f32 {qa}, {p[1]}, {p[1]}, {qa}')
                E(f'v_pk_add_f32 {sa}, {sa}, {p[3]}\nv_pk_fma_f32 {qa}, {p[2]}, {p[2]}, {qa}')
                E(f'v_pk_fma_f32 {qa}, {p[3]}, {p[3]}, {qa}')
            for mt in range(4):
                E(f'v_add_f32 {v(T+4*mt)}, {v(T+4*mt)}, {v(T+4*mt+1)}\nv_add_f32 {v(T+4*mt+2)}, {v(T+4*mt+2)}, {v(T+4*mt+3)}')
            red4(T, T + 4, T + 8, T + 12)
            red4(T + 2, T + 6, T + 10, T + 14)
            E(f'v_mov_b32 {v(T+1)}, {v(T+2)}')
            E(f's_lshl_b32 {s(sT)}, {s(sW)}, 9\ns_add_u32 {s(sT)}, {s(sT)}, {PART}\nv_lshl_add_u32 {v(t0)}, v0, 3, {s(sT)}')
            E(f'ds_write_b64 {v(t0)}, {v(T,2)}')
            V.free(T, 16)
        sSTw, sSTr0, sSTr1 = S.alloc(1), S.alloc(1), S.alloc(1)
        E(f's_lshl_b32 {s(sSTr0)}, {s(sI)}, 13\ns_add_u32 {s(sSTr0)}, {s(sSTr0)}, {WS_STATS}\ns_lshl_b32 {s(sT)}, {s(sJ)}, 10\ns_add_u32 {s(sSTw)}, {s(sSTr0)}, {s(sT)}')
        E(f's_lshl_b32 {s(sT)}, {s(sW)}, 8\ns_add_u32 {s(sSTr0)}, {s(sSTr0)}, {s(sT)}\ns_add_u32 {s(sSTr1)}, {s(sSTr0)}, 4096')
        def stats_publish():
            T = V.alloc(8, 4)
            E(f'v_lshlrev_b32 {v(t0)}, 3, v0\nv_add_u32 {v(t0)}, {PART}, {v(t0)}')
            h = [E(f'ds_read_b64 {v(T+2*k,2)}, {v(t0)} offset:{512*k}') for k in range(4)]
            E(f'v_xor_b32 {v(t1)}, {s(sW)}, {v(vG)}\nv_min_u32 {v(t1)}, 1, {v(t1)}\nv_lshlrev_b32 {v(t1)}, 30, {v(t1)}\nv_or_b32 {v(t1)}, {v(t1)}, {v(vL16)}')
            E.wait(h[3])
            E(f'v_pk_add_f32 {v(T,2)}, {v(T,2)}, {v(T+2,2)}\nv_pk_add_f32 {v(T+4,2)}, {v(T+4,2)}, {v(T+6,2)}\nv_pk_add_f32 {v(T,2)}, {v(T,2)}, {v(T+4,2)}')
            E(f'v_mov_b32 {v(T+2)}, {v(T+1)}\nv_mov_b32 {v(T+1)}, {s(sTAG)}\nv_mov_b32 {v(T+3)}, {s(sTAG)}')
            E(f'buffer_store_dwordx4 {v(T,4)}, {v(t1)}, {srd(WS)}, {s(sSTw)} offen sc1')
            return T
        vSTr = V.alloc(1)
        E(f'v_lshlrev_b32 {v(vSTr)}, 4, {v(vRho)}\nv_lshl_add_u32 {v(vSTr)}, {v(vG)}, 10, {v(vSTr)}')
        hStat = [None]
        def stats_issue():
            E(f'buffer_load_dwordx4 {v(STAT,4)}, {v(vSTr)}, {srd(WS)}, {s(sSTr0)} offen sc1')
            hStat[0] = E(f'buffer_load_dwordx4 {v(STAT+4,4)}, {v(vSTr)}, {srd(WS)}, {s(sSTr1)} offen sc1')
        def stats_gather():
            ok = E.newlabel('L_ok'); lp = E.newlabel('L_poll')
            def chk():
                E(f'v_xor_b32 {v(t0)}, {v(STAT+1)}, {v(STAT+3)}\nv_xor_b32 {v(t1)}, {v(STAT+5)}, {v(STAT+7)}\nv_xor_b32 {v(t2)}, {s(sTAG)}, {v(STAT+1)}\nv_xor_b32 {v(t3)}, {s(sTAG)}, {v(STAT+5)}')
                E(f'v_or3_b32 {v(t0)}, {v(t0)}, {v(t1)}, {v(t2)}\nv_or_b32 {v(t0)}, {v(t0)}, {v(t3)}\nv_cmp_ne_u32 vcc, 0, {v(t0)}\ns_cmp_eq_u64 vcc, 0\ns_cbranch_scc1 {ok}')
            E.wait(hStat[0]); chk()
            E.begin_skip()
            E(f's_mov_b32 {s(sSpin)}, {cfg.spin}')
            E.label(lp)
            E.raw(f'buffer_load_dwordx4 {v(STAT,4)}, {v(vSTr)}, {srd(WS)}, {s(sSTr0)} offen sc1')
            E.raw(f'buffer_load_dwordx4 {v(STAT+4,4)}, {v(vSTr)}, {srd(WS)}, {s(sSTr1)} offen sc1')
            E.raw('s_waitcnt vmcnt(0)')
            chk()
            E(f's_sub_u32 {s(sSpin)}, {s(sSpin)}, 1\ns_cmp_lg_u32 {s(sSpin)}, 0\ns_cbranch_scc1 {lp}')
            E.end_skip()
            E.label(ok)
            A_, B_, C_ = STAT, STAT + 1, STAT + 2
            E(f'v_add_f32 {v(STAT)}, {v(STAT)}, {v(STAT+4)}\nv_add_f32 {v(STAT+1)}, {v(STAT+2)}, {v(STAT+6)}')
            E(f'v_permlane32_swap_b32 {v(A_)}, {v(B_)}\nv_add_f32 {v(A_)}, {v(A_)}, {v(B_)}\nv_mov_b32 {v(C_)}, {v(A_)}')
            E(f'v_permlane16_swap_b32 {v(A_)}, {v(C_)}\nv_add_f32 {v(A_)}, {v(A_)}, {v(C_)}\nv_mov_b32 {v(B_)}, {v(A_)}')
            E(f'v_permlane32_swap_b32 {v(A_)}, {v(B_)}')
            mean_rstd(STAT + 4, A_, B_, 896)
            E(f's_lshl_b32 {s(sT)}, {s(sW)}, 7\ns_add_u32 {s(sT)}, {s(sT)}, {MR}\nv_lshl_add_u32 {v(t0)}, {v(vRho)}, 3, {s(sT)}')
            E(f'ds_write_b64 {v(t0)}, {v(STAT+4,2)}')

        vB0 = vL16
        E(f's_cmp_eq_u32 {s(sW)}, 3\ns_cselect_b32 {s(sT)}, {OOB}, 1024\nv_add_u32 {v(vB1)}, {s(sT)}, {v(vL16)}')
        sKV, sZN = S.alloc(1), S.alloc(1)
        E(f's_lshl_b32 {s(sKV)}, {s(sHead)}, 17\ns_lshl_b32 {s(sT)}, {s(sI)}, 12\ns_add_u32 {s(sZN)}, {s(sKV)}, {WS_ZN}\ns_add_u32 {s(sKV)}, {s(sKV)}, {s(sT)}\ns_add_u32 {s(sKV)}, {s(sKV)}, {WS_KV}')
        hPub = [None]
        def qkv_epilogue():
            cq = 0.25 * 1.4426950408889634
            T = V.alloc(16, 4)
            E(f'v_mov_b32 {v(t2)}, {hex(f2u(cq))}')
            E(f'v_and_b32 {v(t0)}, 0x27, v0\nv_bfe_u32 {v(t1)}, v0, 3, 1\nv_lshl_or_b32 {v(t0)}, {v(t1)}, 4, {v(t0)}\nv_bfe_u32 {v(t1)}, v0, 4, 1\nv_lshl_or_b32 {v(t0)}, {v(t1)}, 3, {v(t0)}\nv_lshlrev_b32 {v(t0)}, 4, {v(t0)}')
            for u in range(2):
                for k in range(4):
                    mt = 2*u + (k >> 1); r = AQ + 16 + 4*mt + 2*(k & 1)
                    E(f'v_cvt_pk_bf16_f32 {v(T+4*u+k)}, {v(r)}, {v(r+1)}')
                for k in range(4):
                    mt = 2*u + (k >> 1); r = AQ + 32 + 4*mt + 2*(k & 1)
                    E(f'v_cvt_pk_bf16_f32 {v(T+8+4*u+k)}, {v(r)}, {v(r+1)}')
                E(f'v_permlane16_swap_b32 {v(T+4*u)}, {v(T+4*u+2)}\nv_permlane16_swap_b32 {v(T+4*u+1)}, {v(T+4*u+3)}')
                E(f'buffer_store_dwordx4 {v(T+8+4*u,4)}, {v(vL16)}, {srd(WS)}, {s(sKV)} offen offset:{2048*u+1024} sc1')
                E(f'buffer_store_dwordx4 {v(T+4*u,4)}, {v(t0)}, {srd(WS)}, {s(sKV)} offen offset:{2048*u} sc1')
            for k in range(8):
                E(f'v_pk_mul_f32 {v(AQ+2*k,2)}, {v(AQ+2*k,2)}, {v(t2,2)} op_sel_hi:[1,0]')
            for k in range(8):
                E(f'v_cvt_pk_bf16_f32 {v(QF+k)}, {v(AQ+2*k)}, {v(AQ+2*k+1)}')
            for u in range(2):
                E(f'v_permlane16_swap_b32 {v(QF+4*u)}, {v(QF+4*u+2)}\nv_permlane16_swap_b32 {v(QF+4*u+1)}, {v(QF+4*u+3)}')
            return T
        def zn_publish():
            M = V.alloc(8, 2); P = V.alloc(16, 4)
            E(f'v_lshlrev_b32 {v(t0)}, 3, {v(vRho)}\nv_add_u32 {v(t0)}, {MR}, {v(t0)}')
            h = [E(f'ds_read_b64 {v(M+2*mt,2)}, {v(t0)} offset:{128*mt}') for mt in range(4)]
            E(f's_mul_i32 {s(sT)}, {s(sW)}, {64*ZT_P}\ns_add_u32 {s(sT)}, {s(sT)}, {ZT}')
            E(f'v_mul_u32_u24 {v(t1)}, {ZT_P}, {v(vRho)}\nv_lshl_add_u32 {v(t1)}, {v(vG)}, 3, {v(t1)}\nv_add_u32 {v(t1)}, {s(sT)}, {v(t1)}')
            E(f'v_and_b32 {v(t2)}, 3, {v(vR4)}\nv_lshl_add_u32 {v(t2)}, {v(vG)}, 3, {v(t2)}\nv_mul_u32_u24 {v(t2)}, {ZT_P}, {v(t2)}\nv_lshl_add_u32 {v(t2)}, {v(vC4)}, 3, {v(t2)}\nv_add_u32 {v(t2)}, {s(sT)}, {v(t2)}')
            for mt in range(4):
                E.wait(h[mt])
                for T in range(2):
                    for k in range(2):
                        p = v(AZ2 + 16*T + 4*mt + 2*k, 2)
                        E(f'v_pk_fma_f32 {p}, {p}, {v(M+2*mt,2)}, {v(M+2*mt,2)} op_sel:[0,0,1] op_sel_hi:[1,0,1]')
                for T in range(2):
                    for k in range(2):
                        r = AZ2 + 16*T + 4*mt + 2*k
                        E(f'v_cvt_pk_bf16_f32 {v(P+4*mt+2*T+k)}, {v(r)}, {v(r+1)}')
                for T in range(2):
                    E(f'ds_write_b64 {v(t1)}, {v(P+4*mt+2*T,2)} offset:{mt*16*ZT_P + 32*T}')
            E.wait_all_ds()
            hh = {}
            for a_ in range(2):
                for T in range(2):
                    for e in range(2):
                        hh[(a_, T)] = E(f'ds_read_b64_tr_b16 {v(P+8*a_+4*T+2*e,2)}, {v(t2)} offset:{(32*a_+4*e)*ZT_P + 32*T}')
            E(f's_lshl_b32 {s(sT)}, {s(sI)}, 12\ns_add_u32 {s(sT)}, {s(sT)}, {s(sZN)}')
            for a_ in range(2):
                for T in range(2):
                    E.wait(hh[(a_, T)])
                    hPub[0] = E(f'buffer_store_dwordx4 {v(P+8*a_+4*T,4)}, {v(vB0 if T == 0 else vB1)}, {srd(WS)}, {s(sT)} offen offset:{2048*a_} sc1')
            V.free(M, 8)
            return P

        plan = {n: [] for n in range(16)}
        for n in range(3, 16):
            at = max(n - cfg.D, 1)
            plan[at] += stage_dmas(n)
        a_next = [0]
        def a_upto(p):
            L = []
            while a_next[0] <= p:
                L += a_dmas(a_next[0]); a_next[0] += 1
            return L
        plan[6] = pf_wsp(0) + plan[6]
        plan[9] = pf_wsp(1) + plan[9]
        plan[13] += a_upto(6)
        plan[14] += a_upto(9)
        plan[15] += a_upto(15)

        for ks in range(4):
            for mt in range(4): x_read(mt, ks)()
        w_reads(0)
        tmp_free = []
        for g in range(48):
            n, sub, per, ks, ps = step_info(g)
            last_of_stage = sub == per - 1
            if last_of_stage and g < 47:
                E.wait_all_ds(); E.wait(hSt[n + 1]); E('s_barrier')
                if n + 1 == 5: tmp_free.append((stats_publish(), 8))
                if n + 1 == 15:
                    E.wait(hPub[0]); flag(sF1w)
            if g == 47:
                E.wait_all_ds(); E('s_barrier')
            if g < 47: w_reads(g + 1)
            fill = []
            if g < 3: fill += [x_read(mt, k2) for k2 in range(4 + 4*g, 8 + 4*g) for mt in range(4)]
            dm = plan[n]
            lo = len(dm) * sub // per; hi = len(dm) * (sub + 1) // per
            fill += dm[lo:hi]
            if g == 30: fill.append(stats_issue)
            E.wait(hW[g])
            run(interleave(mfmas(g), fill))
            if g == 15:
                phase_end('z2gemm')
                z2_epilogue([])
                phase_end('z2epi')
            if g == 31:
                phase_end('qkvgemm')
                stats_gather()
                T = qkv_epilogue()
                E.wait_all_ds(); E('s_barrier')
                P = zn_publish()
                V.free(T, 16); V.free(P, 16)
                V.free(AZ2, 32); V.free(AQ, 48); V.free(STAT, 8)
                for b, k in tmp_free: V.free(b, k)
                phase_end('znpub')
        V.free(WF, 24); V.free(vZoff, 7); V.free(vQoff); V.free(vZtr); V.free(vQtr); V.free(vXw); V.free(vXr); V.free(vSTr)
        phase_end('z1gemm')

        KA, VA = 0, 40
        E(f's_mov_b32 {s(sM)}, 15\ns_mov_b32 {s(sM+1)}, 0\ns_lshl_b64 {s(sM,2)}, {s(sM,2)}, {s(sI)}\ns_lshr_b64 {s(sM,2)}, {s(sM,2)}, 4')
        hP = poll_issue(sF1r)
        E(f'v_mov_b32 {v(t2)}, 0x3f803f80')
        ones = [lambda k=k: E(f'v_accvgpr_write_b32 {a(VA+k)}, {v(t2)}') for k in range(80)]
        gelu(AZ1, 32, a_upto(18) + ones)
        V.free(CG, 2)
        phase_end('z1epi')
        poll_check(hP, sF1r, s(sM, 2))
        stamp('kvready')
        sSkip = S.alloc(1); sKn = S.alloc(10)
        E(f's_lshl_b32 {s(sT)}, {s(sI)}, 1\ns_sub_i32 {s(sSkip)}, 8, {s(sT)}\ns_max_i32 {s(sSkip)}, {s(sSkip)}, 0')
        for n in range(10):
            E(f's_add_i32 {s(sKn+n)}, {s(sKV)}, {2048*(n-8)}')
            if n < 8: E(f's_cmp_gt_u32 {s(sSkip)}, {n}\ns_cselect_b32 {s(sKn+n)}, {OOB}, {s(sKn+n)}')
        hK = [E(f'buffer_load_dwordx4 {a(KA+4*n,4)}, {v(vL16)}, {srd(WS)}, {s(sKn+n)} offen sc1') for n in range(10)]
        vV = V.alloc(1)
        E(f'v_lshrrev_b32 {v(t0)}, 5, v0\nv_lshlrev_b32 {v(t0)}, 8, {v(t0)}\nv_lshl_add_u32 {v(vV)}, {v(vRho)}, 4, {v(t0)}')
        E(f's_mov_b32 {s(sM2)}, 0xffff\ns_mov_b32 {s(sM2+1)}, 0xffff\ns_mov_b64 exec, {s(sM2,2)}')
        hV = {}
        for n in range(10):
            for j2 in range(2):
                hV[(n, j2)] = E(f'buffer_load_dwordx4 {a(VA+8*n+4*j2,4)}, {v(vV)}, {srd(WS)}, {s(sKn+n)} offen offset:{1024+512*j2} sc1')
        E('s_mov_b64 exec, -1')
        V.free(vV)
        V.free(vX); V.free(vCur); V.free(vR4); V.free(vC4)
        if cfg.pf: V.free(vPw)
        MD = V.alloc(16, 4); ME = V.alloc(16, 4)
        E(f'v_and_b32 {v(t0)}, 31, v0\nv_lshrrev_b32 {v(t1)}, 5, v0\nv_lshlrev_b32 {v(t1)}, 2, {v(t1)}\nv_sub_u32 {v(t0)}, {v(t0)}, {v(t1)}\nv_cvt_f32_i32 {v(t0)}, {v(t0)}\nv_add_f32 {v(t0)}, 0.5, {v(t0)}')
        sBig = S.alloc(1)
        E(f's_mov_b32 {s(sBig)}, {hex(f2u(2e30))}')
        for r in range(16):
            kr = (r & 3) + 16 * ((r >> 2) & 1) + 8 * (r >> 3)
            E(f'v_subrev_f32 {v(t1)}, {hex(f2u(float(kr)))}, {v(t0)}\nv_mul_f32 {v(t1)}, {s(sBig)}, {v(t1)}')
            E(f'v_min_f32 {v(MD+r)}, 0, {v(t1)}\nv_min_f32 {v(ME+r)}, 0, -{v(t1)}')
        E(f'v_lshlrev_b32 {v(t0)}, 1, {v(vRho)}\ns_lshl_b32 {s(sT)}, {s(sI)}, 7')
        hB = [E(f'buffer_load_ushort {v(BV+mt)}, {v(t0)}, {srd(BSP)}, {s(sT)} offen offset:{32*mt}') for mt in range(4)]
        run(pf_w3())

        SS = [V.alloc(16, 4) for _ in range(9)]; O = 120
        MX = t0 + 4
        sOo = S.alloc(1)
        E(f'v_bfe_u32 {v(t0)}, v0, 4, 1\nv_mul_u32_u24 {v(t0)}, {ACT_MT}, {v(t0)}\nv_lshrrev_b32 {v(t1)}, 5, v0\nv_lshl_add_u32 {v(t1)}, {v(t1)}, 4, {v(vRho)}\nv_lshl_add_u32 {v(vOo)}, {v(t1)}, 4, {v(t0)}')
        sACT = S.alloc(1)
        E(f's_mul_i32 {s(sACT)}, {s(sI)}, {4*ACT_MT}\ns_add_u32 {s(sACT)}, {s(sACT)}, {WS_ACT}\ns_lshl_b32 {s(sT)}, {s(sHead)}, 9\ns_add_u32 {s(sOo)}, {s(sACT)}, {s(sT)}')
        hO = None
        hF1 = None
        for u in range(2):
            def St(n): return SS[n]
            for n in range(9):
                E.wait(hK[u + n])
                c = v(ME, 16) if n == 0 else (v(MD, 16) if n == 8 else '0')
                E(f'v_mfma_f32_32x32x16_bf16 {v(St(n),16)}, {a(KA+4*(u+n),4)}, {v(QF+4*u,4)}, {c}')
            lab = E.newlabel('L_att')
            E(f's_cmp_le_u32 {s(sSkip)}, {u}\ns_cbranch_scc1 {lab}')
            E.begin_skip()
            E(f'v_mov_b32 {v(t0)}, {hex(f2u(-1e30))}')
            for n in range(8 - u):
                E(f's_cmp_le_u32 {s(sSkip)}, {u+n}\ns_cbranch_scc1 {lab}')
                E.raw('s_nop 11')
                for r in range(16): E(f'v_mov_b32 {v(St(n)+r)}, {v(t0)}')
            E.end_skip()
            E.label(lab)
            for n in range(9):
                for k in range(8):
                    m = MX + (k & 3)
                    if n == 0 and k < 4: E(f'v_max_f32 {v(m)}, {v(St(n)+2*k)}, {v(St(n)+2*k+1)}')
                    else: E(f'v_max3_f32 {v(m)}, {v(St(n)+2*k)}, {v(St(n)+2*k+1)}, {v(m)}')
            E(f'v_max3_f32 {v(MX)}, {v(MX)}, {v(MX+1)}, {v(MX+2)}\nv_max_f32 {v(MX)}, {v(MX)}, {v(MX+3)}\nv_mov_b32 {v(MX+1)}, {v(MX)}')
            E(f'v_permlane32_swap_b32 {v(MX)}, {v(MX+1)}\nv_max_f32 {v(MX)}, {v(MX)}, {v(MX+1)}')
            if u == 1: hF1 = poll_issue(sF1r)
            def pv(n):
                for j2 in range(2):
                    E.wait(hV[(u + n, j2)])
                    c = '0' if (n == 0 and j2 == 0) else a(O, 16)
                    E(f'v_mfma_f32_32x32x16_bf16 {a(O,16)}, {a(VA+8*(u+n)+4*j2,4)}, {v(St(n)+8*j2,4)}, {c}')
            for n in range(9):
                for k in range(8):
                    p = v(St(n) + 2*k, 2)
                    E(f'v_pk_add_f32 {p}, {p}, {v(MX,2)} op_sel_hi:[1,0] neg_lo:[0,1] neg_hi:[0,1]')
                if n: pv(n - 1)
                for r in range(16): E(f'v_exp_f32 {v(St(n)+r)}, {v(St(n)+r)}')
                for j2 in range(2):
                    for k in range(4):
                        E(f'v_cvt_pk_bf16_f32 {v(St(n)+8*j2+k)}, {v(St(n)+8*j2+2*k)}, {v(St(n)+8*j2+2*k+1)}')
            pv(8)
            OV = SS[0]
            E(f'v_accvgpr_read_b32 {v(MX)}, {a(O+8)}')
            for k in range(8): E(f'v_accvgpr_read_b32 {v(OV+4+k)}, {a(O+k)}')
            E(f'v_rcp_f32 {v(MX)}, {v(MX)}')
            for k in range(4): E(f'v_pk_mul_f32 {v(OV+4+2*k,2)}, {v(OV+4+2*k,2)}, {v(MX,2)} op_sel_hi:[1,0]')
            for k in range(4): E(f'v_cvt_pk_bf16_f32 {v(OV+k)}, {v(OV+4+2*k)}, {v(OV+4+2*k+1)}')
            if u: E(f's_add_u32 {s(sOo)}, {s(sOo)}, {2*ACT_MT}')
            hO = E(f'buffer_store_dwordx4 {v(OV,4)}, {v(vOo)}, {srd(WS)}, {s(sOo)} offen sc1')
        [V.free(x, 16) for x in SS]; V.free(MD, 16); V.free(ME, 16); V.free(QF, 8); V.free(vOo)
        phase_end('attn')

        E(f's_mov_b32 {s(sM)}, -1\ns_mov_b32 {s(sM+1)}, 0')
        poll_check(hF1, sF1r, s(sM, 2))
        stamp('znready')
        E(f's_or_b32 {s(sT)}, {s(sI)}, {s(sHead)}\ns_cmp_eq_u32 {s(sT)}, 0\ns_cselect_b32 {s(sT)}, {WS_E}, {OOB}\ns_add_u32 {s(sE)}, {s(sE)}, 1\nv_mov_b32 {v(t0)}, {s(sE)}')
        E(f'buffer_store_dword {v(t0)}, {v(vOne)}, {srd(WS)}, {s(sT)} offen sc1')
        PD = cfg.PD; NZ = PD + 1
        hZ = {}
        def z_loads(g):
            L = []
            for T in range(2):
                def f(T=T):
                    if T == 0 and g and g % 2 == 0: E(f's_add_u32 {s(sZN)}, {s(sZN)}, 4096')
                    hZ[(g, T)] = E(f'buffer_load_dwordx4 {a(8*(g % NZ)+4*T,4)}, {v(vB0 if T == 0 else vB1)}, {srd(WS)}, {s(sZN)} offen offset:{2048*(g & 1)} sc1')
                L.append(f)
            return L
        for g in range(PD): run(z_loads(g))
        G = V.alloc(32, 4); AF = V.alloc(32, 4)
        vAr = V.alloc(6)
        E(f'v_lshrrev_b32 {v(t0)}, 1, {v(vRho)}\nv_xor_b32 {v(t0)}, {v(t0)}, {v(vG)}\nv_lshlrev_b32 {v(t0)}, 4, {v(t0)}\nv_lshl_add_u32 {v(vAr)}, {v(vRho)}, 7, {v(t0)}\nv_xor_b32 {v(vAr+1)}, 64, {v(vAr)}')
        for k in (1, 2):
            E(f'v_add_u32 {v(vAr+2*k)}, {57344*k}, {v(vAr)}\nv_add_u32 {v(vAr+2*k+1)}, {57344*k}, {v(vAr+1)}')
        E.wait(hB[3])
        for mt in range(4):
            E(f'v_lshlrev_b32 {v(BV+mt)}, 16, {v(BV+mt)}')
            for T in range(2):
                for r in range(4): E(f'v_mov_b32 {v(G+16*T+4*mt+r)}, {v(BV+mt)}')
        V.free(BV, 4)
        E.wait(hO); flag(sF2w)
        hAr = {}
        def a_reads(g):
            st = g // 2; pos = apos(st); k = pos // 57344
            for mt in range(4):
                hAr[(g, mt)] = E(f'ds_read_b128 {v(AF+16*(g&1)+4*mt,4)}, {v(vAr+2*k+(g&1))} offset:{pos-57344*k+2048*mt}')
        BP = 2
        E.wait(hA[NA - 1]); E('s_barrier')
        a_reads(0)
        sF3r, sF3w = S.alloc(1), S.alloc(1)
        E(f's_add_u32 {s(sF3r)}, {s(sF2r)}, {WS_F3-WS_F2}\ns_add_u32 {s(sF3w)}, {s(sF2w)}, {WS_F3-WS_F2}')
        hF2 = None
        for g in range(64):
            st = g // 2
            fill = []
            if g % (2 * BP) == 2 * BP - 1:
                E.wait_all_ds()
                nx = [x for x in range(st + 1, st + 1 + BP) if NA <= x < 32]
                if nx: E.wait(hA[nx[-1]])
                if st + 1 - BP + NA < 32 or nx or g == 63: E('s_barrier')
                if st + 1 - BP + NA < 32: fill += a_upto(min(31, st + NA))
            if g < 63: a_reads(g + 1)
            if g + PD < 64: fill = z_loads(g + PD) + fill
            if g == 58:
                def f(): hP2[0] = poll_issue(sF2r)
                hP2 = [None]; fill.append(f)
            L = []
            for T in range(2):
                for mt in range(4):
                    def f(T=T, mt=mt):
                        E.wait(hZ[(g, T)], hAr[(g, mt)])
                        d = v(G + 16*T + 4*mt, 4)
                        E(f'v_mfma_f32_16x16x32_bf16 {d}, {a(8*(g % NZ)+4*T,4)}, {v(AF+16*(g&1)+4*mt,4)}, {d}')
                    L.append(f)
            run(interleave(L, fill))
        stamp('p2gemm')
        Y = AF
        lab3 = E.newlabel('L_y3'); labj = E.newlabel('L_yj')
        for mt in range(4):
            for T in range(2):
                for k in range(2):
                    r = 16*T + 4*mt + 2*k
                    E(f'v_pk_mul_f32 {v(G+r,2)}, {v(G+r,2)}, {v(AZ1+r,2)}')
            for T in range(2):
                for k in range(2):
                    r = G + 16*T + 4*mt + 2*k
                    E(f'v_cvt_pk_bf16_f32 {v(Y+4*mt+2*T+k)}, {v(r)}, {v(r+1)}')
        sY = S.alloc(1)
        E(f's_cmp_eq_u32 {s(sW)}, 3\ns_cbranch_scc1 {lab3}')
        E.begin_skip()
        E(f's_mul_i32 {s(sY)}, {s(sJ)}, 3\ns_add_u32 {s(sY)}, {s(sY)}, {s(sW)}\ns_lshl_b32 {s(sY)}, {s(sY)}, 10\ns_add_u32 {s(sY)}, {s(sY)}, {s(sACT)}\ns_add_u32 {s(sY)}, {s(sY)}, {16*1024}')
        for mt in range(4):
            E.raw(f'buffer_store_dwordx4 {v(Y+4*mt,4)}, {v(vL16)}, {srd(WS)}, {s(sY)} offen sc1')
            if mt < 3: E(f's_add_u32 {s(sY)}, {s(sY)}, {ACT_MT}')
        E(f's_branch {labj}')
        E.end_skip()
        E.label(lab3)
        E.begin_skip()
        E(f's_lshr_b32 {s(sY)}, {s(sJ)}, 1\ns_lshl_b32 {s(sY)}, {s(sY)}, 10\ns_and_b32 {s(sT)}, {s(sJ)}, 1\ns_lshl_b32 {s(sT)}, {s(sT)}, 3\ns_add_u32 {s(sY)}, {s(sY)}, {s(sT)}\ns_add_u32 {s(sY)}, {s(sY)}, {s(sACT)}\ns_add_u32 {s(sY)}, {s(sY)}, {40*1024}')
        for mt in range(4):
            hY = E(f'buffer_store_dwordx2 {v(Y+4*mt,2)}, {v(vL16)}, {srd(WS)}, {s(sY)} offen sc1')
            if mt < 3: E(f's_add_u32 {s(sY)}, {s(sY)}, {ACT_MT}')
        E.end_skip()
        E.label(labj)
        V.free(G, 32); V.free(AZ1, 32); V.free(vAr, 6)
        phase_end('ypub')

        sWo, sWu, sWl = S.alloc(1), S.alloc(1), S.alloc(1)
        E(f's_lshl_b32 {s(sT)}, {s(sJ)}, 7\ns_and_b32 {s(sT2)}, {s(sW)}, 1\ns_lshl_b32 {s(sT2)}, {s(sT2)}, 14\ns_add_u32 {s(sWo)}, {s(sT)}, {s(sT2)}')
        E(f's_lshr_b32 {s(sT2)}, {s(sW)}, 1\ns_lshl_b32 {s(sT2)}, {s(sT2)}, 13\ns_add_u32 {s(sWo)}, {s(sWo)}, {s(sT2)}')
        E(f's_lshl_b32 {s(sT2)}, {s(sW)}, 13\ns_add_u32 {s(sWu)}, {s(sT)}, {s(sT2)}')
        E(f's_cmp_lt_u32 {s(sW)}, 2\ns_cselect_b32 {s(sT2)}, 1, 2\ns_mul_i32 {s(sT2)}, {s(sT2)}, {96*1024}\ns_add_u32 {s(sWl)}, {s(sWu)}, {s(sT2)}')
        hW3 = {}
        def w3_dma(st):
            def f():
                E(f's_add_u32 m0, {s(sW1K)}, {(st % 40) * 4096}')
                if st < 16:
                    E(f's_add_u32 {s(sT)}, {s(sWo)}, {st*32*1024}'); r = WO
                elif st < 40:
                    jj, ww = divmod(st - 16, 3)
                    E(f's_add_u32 {s(sT)}, {s(sWu)}, {(112*jj+32*ww)*1024}'); r = WOUT
                else:
                    E(f's_add_u32 {s(sT)}, {s(sWl)}, {224*(st-40)*1024}'); r = WOUT
                hW3[st] = E(f'buffer_load_dwordx4 {v(vWoff)}, {srd(r)}, {s(sT)} offen lds')
            return f
        for st in range(16): w3_dma(st)()
        poll_check(hP2[0], sF2r, s(sM, 2))
        sAc = S.alloc(1)
        E(f's_mul_i32 {s(sAc)}, {s(sW)}, {ACT_MT}\ns_add_u32 {s(sAc)}, {s(sAc)}, {s(sACT)}')
        hAc = {}
        def act_load(st):
            if st and st % 4 == 0: E(f's_add_u32 {s(sAc)}, {s(sAc)}, 4096')
            hAc[st] = E(f'buffer_load_dwordx4 {a(4*st,4)}, {v(vL16)}, {srd(WS)}, {s(sAc)} offen offset:{1024*(st & 3)} sc1')
        for st in range(8): act_load(st)
        E.wait(hY); flag(sF3w)
        for st in range(8, 16): act_load(st)
        C3 = V.alloc(16, 4); XQ = V.alloc(8, 2); vXo = V.alloc(1); sXo = S.alloc(1)
        E(f'v_lshlrev_b32 {v(t0)}, 10, {v(vRho)}\nv_lshl_add_u32 {v(vXo)}, {v(vG)}, 3, {v(t0)}\ns_lshl_b32 {s(sT)}, {s(sJ)}, 7\ns_add_u32 {s(sXo)}, {s(sX)}, {s(sT)}')
        hXq = [E(f'buffer_load_dwordx2 {v(XQ+2*T,2)}, {v(vXo)}, {srd(X)}, {s(sXo)} offen offset:{32*T}') for T in range(4)]
        vWt = V.alloc(4)
        for T in range(4):
            E(f'v_xor_b32 {v(t0)}, {T}, {v(vSwz)}\nv_lshl_add_u32 {v(vWt+T)}, {v(t0)}, 5, {v(vRowC)}')
        W3 = V.alloc(32, 4)
        hR3 = {}
        win = [0]
        def w3_reads(st):
            pos = (st % 40) * 4096; k = pos // 61440
            if k != win[0]:
                for T in range(4): E(f'v_add_u32 {v(vWt+T)}, {(61440*(k-win[0])) & 0xffffffff}, {v(vWt+T)}')
                win[0] = k
            for T in range(4):
                for e in range(2):
                    hR3[(st, T)] = E(f'ds_read_b64_tr_b16 {v(W3+16*(st&1)+4*T+2*e,2)}, {v(vWt+T)} offset:{pos-61440*k+2048*e}')
        E.wait(hW3[15]); E('s_barrier')
        w3_reads(0)
        later = [w3_dma(st) for st in range(16, 40)]
        E.wait(hXq[3])
        for T in range(4):
            for k in range(2):
                E(f'v_lshlrev_b32 {v(C3+4*T+2*k)}, 16, {v(XQ+2*T+k)}\nv_and_b32 {v(C3+4*T+2*k+1)}, {s(sMask)}, {v(XQ+2*T+k)}')
        hF3 = None
        for st in range(44):
            fill = []
            if st == 4:
                E('s_barrier')
                later = later + [w3_dma(x) for x in range(40, 44)]
            if st < 14:
                fill = later[:2]; later = later[2:]
            if st == 15:
                assert not later
                stamp('p3a')
                hF3 = poll_issue(sF3r)
                poll_check(hF3, sF3r, s(sM, 2))
                stamp('yready')
                for x in range(16, 44): act_load(x)
                E.wait_all_ds(); E.wait(hW3[43]); E('s_barrier')
            if st < 43: w3_reads(st + 1)
            L = []
            for T in range(4):
                def f(T=T):
                    E.wait(hAc[st], hR3[(st, T)])
                    d = v(C3 + 4*T, 4)
                    E(f'v_mfma_f32_16x16x32_bf16 {d}, {v(W3+16*(st&1)+4*T,4)}, {a(4*st,4)}, {d}')
                L.append(f)
            run(interleave(L, fill))
        stamp('p3b')
        for T in range(4):
            for k in range(2):
                E(f'v_cvt_pk_bf16_f32 {v(XQ+2*T+k)}, {v(C3+4*T+2*k)}, {v(C3+4*T+2*k+1)}')
        E(f'v_and_b32 {v(t0)}, 1, {v(vG)}\nv_lshlrev_b32 {v(t0)}, 5, {v(t0)}\nv_lshrrev_b32 {v(t1)}, 1, {v(vG)}\nv_lshl_add_u32 {v(t0)}, {v(t1)}, 4, {v(t0)}\nv_lshl_add_u32 {v(t0)}, {v(vRho)}, 10, {v(t0)}')
        for pr in range(2):
            E(f'v_permlane16_swap_b32 {v(XQ+4*pr)}, {v(XQ+4*pr+2)}\nv_permlane16_swap_b32 {v(XQ+4*pr+1)}, {v(XQ+4*pr+3)}')
            E(f'buffer_store_dwordx4 {v(XQ+4*pr,4)}, {v(t0)}, {srd(OUT)}, {s(sXo)} offen offset:{64*pr}')
        stamp('end')

    try:
        body()
    except Stop:
        pass
    E.raw('s_waitcnt vmcnt(0) lgkmcnt(0)')
    E.label('L_end')
    E('s_endpgm')
    txt = E.finish()
    info = dict(vhi=V.hi, shi=S.hi, nops=E.nops, stamps=stamp_names, ninstr=len(E.L))
    f = build_file([dict(name=NAME, single=True, grid=256, block=256, lds=LDS_BYTES, body=txt, vgpr=512, accum=256, sgpr=102)])
    return f, info


if __name__ == '__main__':
    f, info = gen(Cfg())
    out = sys.argv[1] if len(sys.argv) > 1 else 'k.s'
    open(out, 'w').write(f)
    print(info)
```
